```python
import torch

def _softmax(x, axis=-1):
    return torch.softmax(x, dim=axis)
def _gelu(x):
    return torch.nn.functional.gelu(x, approximate="tanh")
def _silu(x):
    return torch.nn.functional.silu(x)
def _sigmoid(x):
    return torch.sigmoid(x)
def _layernorm(x, axis=-1, eps=1e-5):
    m = x.mean(dim=axis, keepdim=True)
    v = x.var(dim=axis, keepdim=True, unbiased=False)
    return (x - m) / torch.sqrt(v + eps)
def _scatter_add(tgt, idx, src, axis=0):
    return tgt.clone().index_add_(axis, idx, src)
def _segment_sum(src, seg, n):
    out = torch.zeros((n,) + src.shape[1:], dtype=src.dtype)
    return out.index_add_(0, seg, src)
def _pad(x, pw):
    flat = tuple(v for pair in reversed(pw) for v in pair)
    return torch.nn.functional.pad(x, flat)

kernel_name = 'standalone__paged_block_table_kv_radixattention__sampling'

def setup_inputs():

    _w = (lambda a: (lambda t: t.to(torch.bfloat16) if t.is_floating_point() else t)(torch.as_tensor(a)))
    B, H, Hkv, Dh = 8, 32, 8, 128
    Lk = 2048
    bs = 16
    nb = max(2, Lk // bs)
    P = max(1, nb // 2)
    n_phys = P + B * (nb - P)
    shared = torch.arange(P, dtype=torch.int64)
    priv = P + torch.arange(B * (nb - P), dtype=torch.int64).reshape(B, nb - P)
    bt = torch.cat([torch.tile(shared[None, :], (B, 1)), priv], dim=1)
    ctx = nb * bs - (torch.arange(1, B + 1, dtype=torch.int64) * 2654435761) % max(1, (nb * bs - P * bs) // 2)
    return {
        "q": _w((lambda *s: torch.randn(*s, dtype=torch.bfloat16) * 0.8)(B, H, Dh)),
        "k_cache": _w((lambda *s: torch.randn(*s, dtype=torch.bfloat16) * 0.8)(n_phys, bs, Hkv, Dh)),
        "v_cache": _w((lambda *s: torch.randn(*s, dtype=torch.bfloat16) * 0.05)(n_phys, bs, Hkv, Dh)),
        "block_table": _w(bt.to(torch.int64)),
        "ctx_lens": _w(torch.as_tensor(ctx).to(torch.int64)),
    }

def reference(q, k_cache, v_cache, block_table, ctx_lens):
    B, H, Dh = q.shape
    n_phys, bs, Hkv, _ = k_cache.shape
    nb = block_table.shape[1]
    Lk = nb * bs
    rep = H // Hkv
    k = k_cache[block_table].reshape(B, Lk, Hkv, Dh)
    v = v_cache[block_table].reshape(B, Lk, Hkv, Dh)
    k = (lambda x, n, axis: torch.repeat_interleave(x, n, dim=axis))(k, rep, axis=2)
    v = (lambda x, n, axis: torch.repeat_interleave(x, n, dim=axis))(v, rep, axis=2)
    scores = torch.einsum("bhd,bkhd->bhk", q, k) * (Dh ** -0.5)
    pos = torch.arange(Lk)
    valid = pos[None, :] < ctx_lens[:, None]
    scores = torch.where(valid[:, None, :], scores, -1e9)
    p = _softmax(scores, axis=-1)
    return torch.einsum("bhk,bkhd->bhd", p, v)
```

```python
NAME = "standalone__paged_block_table_kv_radixattention__sampling"
hdr = open("cdna_kernels/%s.s.ref" % NAME).read().split("; Override launch")[0]
o = []
def e(s=""): o.append(s)

e(hdr.rstrip())
e("; @launch kernel=%s_kernel grid=(1024,1,1) block=(256,1,1) lds=8320" % NAME)
e("; @launch kernel=%s_combine_kernel grid=(256,1,1) block=(64,1,1) lds=0" % NAME)
e('.amdgcn_target "amdgcn-amd-amdhsa--gfx950"')
e(".text")
e(".globl %s_kernel" % NAME)
e(".p2align 8")
e(".type %s_kernel,@function" % NAME)
e("%s_kernel:" % NAME)

KBYTES = 576*16*8*128*2
QBYTES = 8*32*128*2
ML_OFF = 4*1024*1024

e(f"""
    s_cmp_ge_u32 s2, 1024
    s_cbranch_scc1 L1_end
    s_load_dwordx16 s[4:19], s[0:1], 0
    s_and_b32 s36, s2, 7                 ; hkv
    s_lshr_b32 s37, s2, 3
    s_and_b32 s38, s37, 15
    s_lshr_b32 s39, s37, 4               ; b
    v_lshrrev_b32 v1, 6, v0
    v_and_b32 v2, 15, v0                 ; n
    v_readfirstlane_b32 s40, v1
    v_bfe_u32 v3, v0, 4, 2               ; g
    s_lshl_b32 s41, s39, 2               ; b*4
    s_lshl_b32 s43, s39, 9               ; b*512
    s_lshl_b32 s46, s38, 5               ; chunk*32
    s_add_u32 s43, s43, s46
    s_lshl_b32 s46, s40, 3               ; w*8
    s_add_u32 s43, s43, s46
    s_waitcnt lgkmcnt(0)
    s_load_dword s42, s[12:13], s41      ; ctx
    s_load_dwordx2 s[44:45], s[10:11], s43
    ; SRDs
    s_mov_b32 s20, s6
    s_and_b32 s21, s7, 0xffff
    s_mov_b32 s22, {KBYTES}
    s_mov_b32 s23, 0x00020000
    s_mov_b32 s24, s8
    s_and_b32 s25, s9, 0xffff
    s_mov_b32 s26, {KBYTES}
    s_mov_b32 s27, 0x00020000
    s_mov_b32 s28, s4
    s_and_b32 s29, s5, 0xffff
    s_mov_b32 s30, {QBYTES}
    s_mov_b32 s31, 0x00020000
    s_mov_b32 s32, s18
    s_and_b32 s33, s19, 0xffff
    s_mov_b32 s34, 0x800000
    s_mov_b32 s35, 0x00020000
    v_lshlrev_b32 v4, 11, v2
    v_lshl_add_u32 v4, v3, 4, v4         ; voffK = n*2048 + g*16
    v_lshlrev_b32 v5, 13, v3
    v_lshl_add_u32 v5, v2, 4, v5         ; voffV0 = g*8192 + n*16
    v_add_u32 v6, 0x1000, v5             ; voffV1
    v_lshlrev_b32 v7, 8, v2
    v_lshl_add_u32 v7, v3, 4, v7         ; voffQ = n*256 + g*16
    s_lshl_b32 s47, s38, 7
    s_lshl_b32 s48, s40, 5
    s_add_u32 s48, s48, s47
    s_lshl_b32 s49, s36, 8               ; hkv*256
    s_lshl_b32 s50, s39, 13              ; b*32*256
    s_lshl_b32 s51, s36, 10              ; hkv*4*256
    s_add_u32 s50, s50, s51              ; q soffset
    s_mov_b32 s52, 0x05040100
    s_mov_b32 s53, 0x07060302
    s_mov_b32 s54, 0x3e0293ee
    s_waitcnt lgkmcnt(0)
    s_cmp_ge_u32 s47, s42
    s_cbranch_scc1 L1_end
    s_cmp_ge_u32 s48, s42
    s_cbranch_scc1 L1_empty
    s_lshl_b32 s44, s44, 15
    s_lshl_b32 s45, s45, 15
    s_add_u32 s44, s44, s49
    s_add_u32 s45, s45, s49
""")
for j in range(4):
    e(f"    buffer_load_dwordx4 v[{8+4*j}:{11+4*j}], v7, s[28:31], s50 offen offset:{64*j}")
for tt in range(2):
    for j in range(4):
        r = 24 + (tt*4+j)*4
        e(f"    buffer_load_dwordx4 v[{r}:{r+3}], v4, s[20:23], s{44+tt} offen offset:{64*j}")
for i in range(8):
    r = 56 + 4*i
    tt = i >> 2
    vo = 5 + ((i & 3) >> 1)
    off = (i & 1) * 2048
    e(f"    buffer_load_dwordx4 v[{r}:{r+3}], v{vo}, s[24:27], s{44+tt} offen offset:{off}")
e("    v_lshlrev_b32 v1, 2, v3")
e("    v_add_u32 v1, s48, v1")
e("    s_waitcnt vmcnt(8)")
for j in range(4):
    for tt in range(2):
        k = 24 + (tt*4+j)*4
        c = "0" if j == 0 else f"v[{88+4*tt}:{91+4*tt}]"
        e(f"    v_mfma_f32_16x16x32_bf16 v[{88+4*tt}:{91+4*tt}], v[{k}:{k+3}], v[{8+4*j}:{11+4*j}], {c}")
e("    v_mov_b32 v12, 0xf149f2ca            ; -1e30")
e("    s_nop 7")
for i in range(8):
    tt, r = i >> 2, i & 3
    e(f"    v_mul_f32 v{88+i}, s54, v{88+i}")
    e(f"    v_add_u32 v13, {tt*16+r}, v1")
    e(f"    v_cmp_gt_u32 vcc, s42, v13")
    e(f"    s_nop 1")
    e(f"    v_cndmask_b32 v{88+i}, v12, v{88+i}, vcc")
e("    v_max3_f32 v14, v88, v89, v90")
e("    v_max3_f32 v14, v14, v91, v92")
e("    v_max3_f32 v14, v14, v93, v94")
e("    v_max_f32 v14, v14, v95")
def xreduce(op, reg, tmp):
    e(f"    v_mov_b32 v{tmp}, v{reg}")
    e(f"    s_nop 1")
    e(f"    v_permlane16_swap_b32 v{reg}, v{tmp}")
    e(f"    v_{op}_f32 v{reg}, v{reg}, v{tmp}")
    e(f"    v_mov_b32 v{tmp}, v{reg}")
    e(f"    s_nop 1")
    e(f"    v_permlane32_swap_b32 v{reg}, v{tmp}")
    e(f"    v_{op}_f32 v{reg}, v{reg}, v{tmp}")
xreduce("max", 14, 13)
for i in range(8):
    e(f"    v_sub_f32 v{88+i}, v{88+i}, v14")
for i in range(8):
    e(f"    v_exp_f32 v{88+i}, v{88+i}")
e("    s_nop 0")
e("    v_add_f32 v15, v88, v89")
for i in range(2, 8):
    e(f"    v_add_f32 v15, v15, v{88+i}")
xreduce("add", 15, 13)
for q in range(4):
    e(f"    v_cvt_pk_bf16_f32 v{8+q}, v{88+2*q}, v{89+2*q}")
e("    s_waitcnt vmcnt(0)")
for ee in range(8):
    c = ee >> 1
    sel = "s52" if (ee & 1) == 0 else "s53"
    for q in range(4):
        e(f"    v_perm_b32 v{24+ee*4+q}, v{56+4*(2*q+1)+c}, v{56+4*(2*q)+c}, {sel}")
e("    s_nop 1")
for ee in range(8):
    e(f"    v_mfma_f32_16x16x32_bf16 v[{96+4*ee}:{99+4*ee}], v[8:11], v[{24+4*ee}:{27+4*ee}], 0")
e("    s_nop 7")
e("    s_branch L1_join")
e("L1_empty:")
e("    v_mov_b32 v14, 0xf149f2ca")
e("    v_mov_b32 v15, 0")
for i in range(32):
    e(f"    v_mov_b32 v{96+i}, 0")
e("L1_join:")
e(f"""
    s_lshl_b32 s55, s40, 11              ; w*2048
    v_lshlrev_b32 v1, 4, v2
    v_add_u32 v1, s55, v1                ; w*2048 + n*16
    s_lshl_b32 s55, s40, 5               ; w*32
    v_lshlrev_b32 v13, 3, v2
    v_add_u32 v13, s55, v13              ; w*32 + n*8
    s_mov_b64 exec, 0xffff
""")
for ee in range(8):
    e(f"    ds_write_b128 v1, v[{96+4*ee}:{99+4*ee}] offset:{ee*256}")
e(f"""
    s_mov_b64 exec, 0xf
    ds_write_b64 v13, v[14:15] offset:8192
    s_mov_b64 exec, -1
    s_waitcnt lgkmcnt(0)
    s_barrier
    v_lshlrev_b32 v1, 3, v0              ; t*8
    v_and_b32 v2, 1, v0
    v_lshlrev_b32 v2, 4, v2              ; (t&1)*16
""")
for w in range(4):
    e(f"    ds_read_b64 v[{16+2*w}:{17+2*w}], v1 offset:{w*2048}")
for w in range(4):
    e(f"    ds_read_b128 v[{24+4*w}:{27+4*w}], v2 offset:{8192+w*32}")
e("    s_waitcnt lgkmcnt(0)")
e("    v_max3_f32 v40, v24, v28, v32")
e("    v_max_f32 v40, v40, v36              ; M0")
e("    v_max3_f32 v42, v26, v30, v34")
e("    v_max_f32 v42, v42, v38              ; M1")
for w in range(4):
    e(f"    v_sub_f32 v{24+4*w}, v{24+4*w}, v40")
    e(f"    v_sub_f32 v{26+4*w}, v{26+4*w}, v42")
for w in range(4):
    e(f"    v_exp_f32 v{24+4*w}, v{24+4*w}")
    e(f"    v_exp_f32 v{26+4*w}, v{26+4*w}")
e("    s_nop 0")
e("    v_mul_f32 v41, v24, v25")
e("    v_mul_f32 v43, v26, v27")
e("    v_mul_f32 v44, v24, v16")
e("    v_mul_f32 v45, v26, v17")
for w in range(1, 4):
    e(f"    v_fmac_f32 v41, v{24+4*w}, v{25+4*w}")
    e(f"    v_fmac_f32 v43, v{26+4*w}, v{27+4*w}")
    e(f"    v_fmac_f32 v44, v{24+4*w}, v{16+2*w}")
    e(f"    v_fmac_f32 v45, v{26+4*w}, v{17+2*w}")
e(f"""
    s_lshl_b32 s55, s39, 3
    s_add_u32 s55, s55, s36
    s_lshl_b32 s55, s55, 4
    s_add_u32 s55, s55, s38
    s_lshl_b32 s56, s55, 11
    s_lshl_b32 s57, s55, 5
    s_add_u32 s57, s57, {ML_OFF}
    buffer_store_dwordx2 v[44:45], v1, s[32:35], s56 offen
    v_cmp_gt_u32 vcc, 2, v0
    s_and_saveexec_b64 s[58:59], vcc
    s_cbranch_execz L1_end
    buffer_store_dwordx4 v[40:43], v2, s[32:35], s57 offen
L1_end:
    s_endpgm
""")

e(".globl %s_combine_kernel" % NAME)
e(".p2align 8")
e(".type %s_combine_kernel,@function" % NAME)
e("%s_combine_kernel:" % NAME)
e(f"""
    s_cmp_ge_u32 s2, 256
    s_cbranch_scc1 L2_end
    s_load_dwordx16 s[4:19], s[0:1], 0
    s_lshr_b32 s36, s2, 2
    s_and_b32 s37, s2, 3                 ; quarter
    s_lshr_b32 s39, s36, 3               ; b
    s_lshl_b32 s41, s39, 2
    s_lshl_b32 s40, s37, 6
    v_add_u32 v1, s40, v0                ; t
    s_waitcnt lgkmcnt(0)
    s_load_dword s42, s[12:13], s41      ; ctx
    s_mov_b32 s32, s18
    s_and_b32 s33, s19, 0xffff
    s_mov_b32 s34, 0x800000
    s_mov_b32 s35, 0x00020000
    s_mov_b32 s28, s14
    s_and_b32 s29, s15, 0xffff
    s_mov_b32 s30, {QBYTES}
    s_mov_b32 s31, 0x00020000
    v_lshlrev_b32 v2, 3, v1              ; t*8
    v_and_b32 v3, 1, v1
    v_lshlrev_b32 v3, 4, v3              ; (t&1)*16
    s_lshl_b32 s56, s36, 15              ; bh*16*2048
    s_lshl_b32 s57, s36, 9               ; bh*16*32
    s_add_u32 s57, s57, {ML_OFF}
    v_mov_b32 v4, 0xf149f2ca
""")
for c in range(16):
    e(f"    v_mov_b32 v{16+2*c}, 0")
    e(f"    v_mov_b32 v{17+2*c}, 0")
    e(f"    v_mov_b32 v{48+4*c}, v4")
    e(f"    v_mov_b32 v{49+4*c}, 0")
    e(f"    v_mov_b32 v{50+4*c}, v4")
    e(f"    v_mov_b32 v{51+4*c}, 0")
e("    s_waitcnt lgkmcnt(0)")
e("    s_add_u32 s42, s42, 127")
e("    s_lshr_b32 s42, s42, 7")
for c in range(16):
    if c > 0:
        e(f"    s_cmp_le_u32 s42, {c}")
        e(f"    s_cbranch_scc1 L2_loaded")
    e(f"    buffer_load_dwordx2 v[{16+2*c}:{17+2*c}], v2, s[32:35], s56 offen")
    e(f"    buffer_load_dwordx4 v[{48+4*c}:{51+4*c}], v3, s[32:35], s57 offen offset:{32*c}")
    e(f"    s_add_u32 s56, s56, 2048")
e("L2_loaded:")
e("    s_waitcnt vmcnt(0)")
e("    v_max_f32 v5, v48, v52")
e("    v_max_f32 v6, v50, v54")
for c in range(2, 16):
    e(f"    v_max_f32 v5, v5, v{48+4*c}")
    e(f"    v_max_f32 v6, v6, v{50+4*c}")
for c in range(16):
    e(f"    v_sub_f32 v{48+4*c}, v{48+4*c}, v5")
    e(f"    v_sub_f32 v{50+4*c}, v{50+4*c}, v6")
for c in range(16):
    e(f"    v_exp_f32 v{48+4*c}, v{48+4*c}")
    e(f"    v_exp_f32 v{50+4*c}, v{50+4*c}")
e("    s_nop 0")
e("    v_mul_f32 v7, v48, v49")
e("    v_mul_f32 v8, v50, v51")
e("    v_mul_f32 v9, v48, v16")
e("    v_mul_f32 v10, v50, v17")
for c in range(1, 16):
    e(f"    v_fmac_f32 v7, v{48+4*c}, v{49+4*c}")
    e(f"    v_fmac_f32 v8, v{50+4*c}, v{51+4*c}")
    e(f"    v_fmac_f32 v9, v{48+4*c}, v{16+2*c}")
    e(f"    v_fmac_f32 v10, v{50+4*c}, v{17+2*c}")
e(f"""
    v_rcp_f32 v7, v7
    v_rcp_f32 v8, v8
    s_nop 0
    v_mul_f32 v9, v9, v7
    v_mul_f32 v10, v10, v8
    v_cvt_pk_bf16_f32 v9, v9, v10
    v_lshrrev_b32 v11, 5, v1             ; e
    v_bfe_u32 v12, v1, 1, 4              ; n
    v_lshl_add_u32 v11, v12, 3, v11      ; 8n+e
    v_lshlrev_b32 v11, 1, v11
    v_and_b32 v12, 1, v1
    v_lshl_add_u32 v11, v12, 9, v11      ; + r*256
    s_lshl_b32 s56, s36, 10              ; bh*4*256
    buffer_store_short v9, v11, s[28:31], s56 offen
    buffer_store_short_d16_hi v9, v11, s[28:31], s56 offen offset:256
L2_end:
    s_endpgm
""")
e('.section .rodata,"a"')
for k, nv in ((NAME + "_kernel", 128), (NAME + "_combine_kernel", 112)):
    e(".p2align 6")
    e(f".amdhsa_kernel {k}")
    e(f"  .amdhsa_next_free_vgpr {nv}")
    e("  .amdhsa_next_free_sgpr 64")
    e(f"  .amdhsa_accum_offset {nv}")
    e("  .amdhsa_group_segment_fixed_size 0")
    e("  .amdhsa_kernarg_size 64")
    e("  .amdhsa_user_sgpr_count 2")
    e("  .amdhsa_user_sgpr_kernarg_segment_ptr 1")
    e("  .amdhsa_system_sgpr_workgroup_id_x 1")
    e(".end_amdhsa_kernel")
open("cdna_kernels/%s.s" % NAME, "w").write("\n".join(o) + "\n")
```

```python
import os
STAGE=int(os.environ.get("STAGE","9"))
OUT=os.environ.get("OUT")
NT=os.environ.get("NT","")
NAME = "standalone__paged_block_table_kv_radixattention__sampling"
hdr = open("cdna_kernels/%s.s.ref" % NAME).read().split("; Override launch")[0]
o = []
def e(s=""): o.append(s)
e(hdr.rstrip())
e("; @launch kernel=%s_kernel grid=(1024,1,1) block=(256,1,1) lds=8320" % NAME)
e("; @launch kernel=%s_combine_kernel grid=(256,1,1) block=(64,1,1) lds=0" % NAME)
e('.amdgcn_target "amdgcn-amd-amdhsa--gfx950"')
e(".text")
e(".globl %s_kernel" % NAME)
e(".p2align 8")
e(".type %s_kernel,@function" % NAME)
e("%s_kernel:" % NAME)
KBYTES = 576*16*8*128*2
QBYTES = 8*32*128*2
ML_OFF = 4*1024*1024
e(f"""
    s_cmp_ge_u32 s2, 1024
    s_cbranch_scc1 L1_end
    s_load_dwordx16 s[4:19], s[0:1], 0
    s_and_b32 s60, s2, 7
    s_lshr_b32 s37, s2, 3
    s_and_b32 s61, s37, 1                ; c'
    s_bfe_u32 s36, s37, 0x30001          ; hkv
    s_lshr_b32 s39, s37, 4               ; b
    s_lshl_b32 s38, s61, 3
    s_add_u32 s38, s38, s60
    v_lshrrev_b32 v1, 6, v0
    v_and_b32 v2, 15, v0                 ; n
    v_readfirstlane_b32 s40, v1
    v_bfe_u32 v3, v0, 4, 2               ; g
    s_lshl_b32 s41, s39, 2               ; b*4
    s_lshl_b32 s62, s61, 2
    s_add_u32 s62, s62, s40              ; 4c'+w
    s_lshl_b32 s62, s62, 3
    s_add_u32 s62, s62, s60
    s_lshl_b32 s43, s39, 9               ; b*512
    s_lshl_b32 s46, s62, 3
    s_add_u32 s43, s43, s46
    s_waitcnt lgkmcnt(0)
    {"s_branch L1_end" if STAGE==0 else ""}
    s_load_dword s42, s[12:13], s41      ; ctx
    s_load_dwordx2 s[44:45], s[10:11], s43
    s_mov_b32 s20, s6
    s_and_b32 s21, s7, 0xffff
    s_mov_b32 s22, {KBYTES}
    s_mov_b32 s23, 0x00020000
    s_mov_b32 s24, s8
    s_and_b32 s25, s9, 0xffff
    s_mov_b32 s26, {KBYTES}
    s_mov_b32 s27, 0x00020000
    s_mov_b32 s28, s4
    s_and_b32 s29, s5, 0xffff
    s_mov_b32 s30, {QBYTES}
    s_mov_b32 s31, 0x00020000
    s_mov_b32 s32, s18
    s_and_b32 s33, s19, 0xffff
    s_mov_b32 s34, 0x800000
    s_mov_b32 s35, 0x00020000
    v_lshrrev_b32 v8, 2, v2
    v_and_b32 v9, 3, v2                  ; c
    v_lshl_add_u32 v10, v3, 2, v9        ; 4g + c
    v_lshlrev_b32 v10, 4, v10            ; (4g+c)*16
    v_lshl_add_u32 v4, v8, 11, v10       ; voffK = a*2048 + (4g+c)*16
    v_add_u32 v11, 0x2000, v4            ; +4 tokens*2048
    v_add_u32 v12, 0x4000, v4
    v_add_u32 v13, 0x6000, v4
    v_lshl_add_u32 v7, v8, 8, v10        ; voffQ = h*256 + (4g+c)*16
    v_lshlrev_b32 v5, 11, v3
    v_lshl_add_u32 v5, v2, 4, v5         ; voffV = g*2048 + n*16
    v_add_u32 v14, 0x2000, v5
    v_add_u32 v15, 0x4000, v5
    v_add_u32 v16, 0x6000, v5
    s_lshl_b32 s48, s62, 5
    s_lshl_b32 s49, s36, 8               ; hkv*256
    s_lshl_b32 s50, s39, 13              ; b*32*256
    s_lshl_b32 s51, s36, 10              ; hkv*4*256
    s_add_u32 s50, s50, s51              ; q soffset
    s_mov_b32 s52, 0x05040100
    s_mov_b32 s53, 0x07060302
    s_mov_b32 s54, 0x3e0293ee
    buffer_load_dwordx4 v[20:23], v7, s[28:31], s50 offen {NT}
    s_waitcnt lgkmcnt(0)
    {"s_branch L1_end" if STAGE==1 else ""}
    s_cmp_ge_u32 s48, s42
    s_cbranch_scc1 L1_empty
    s_lshl_b32 s44, s44, 15
    s_lshl_b32 s45, s45, 15
    s_add_u32 s44, s44, s49
    s_add_u32 s45, s45, s49
""")
KR=24; VR=56; SR=88; OR_=96
kv=[4,11,12,13]; vv=[5,14,15,16]
for m in range(8):
    e(f"    buffer_load_dwordx4 v[{KR+4*m}:{KR+3+4*m}], v{kv[m&3]}, s[20:23], s{44+(m>>2)} offen {NT}")
for i in range(8):
    e(f"    buffer_load_dwordx4 v[{VR+4*i}:{VR+3+4*i}], v{vv[i&3]}, s[24:27], s{44+(i>>2)} offen {NT}")
if STAGE==2:
    e("    s_waitcnt vmcnt(0)")
    e("    s_branch L1_end")
e("    v_cmp_eq_u32 s[64:65], 0, v9")
e("    v_cmp_eq_u32 s[66:67], 1, v9")
e("    v_cmp_eq_u32 s[68:69], 2, v9")
e("    v_add_u32 v1, s48, v3")
e("    v_mov_b32 v17, 0xf149f2ca            ; -1e30")
e("    s_waitcnt vmcnt(0)")
for m in range(8):
    e(f"    v_mfma_f32_16x16x32_bf16 v[{OR_+4*m}:{OR_+3+4*m}], v[{KR+4*m}:{KR+3+4*m}], v[20:23], 0")
e("    s_nop 7")
for m in range(8):
    d=OR_+4*m
    e(f"    v_cndmask_b32 v{SR+m}, v{d+3}, v{d+2}, s[68:69]")
    e(f"    v_cndmask_b32 v{SR+m}, v{SR+m}, v{d+1}, s[66:67]")
    e(f"    v_cndmask_b32 v{SR+m}, v{SR+m}, v{d}, s[64:65]")
e("    s_nop 1")
for m in range(8):
    e(f"    v_add_f32_dpp v{SR+m}, v{SR+m}, v{SR+m} quad_perm:[1,0,3,2] row_mask:0xf bank_mask:0xf")
e("    s_nop 1")
for m in range(8):
    e(f"    v_add_f32_dpp v{SR+m}, v{SR+m}, v{SR+m} quad_perm:[2,3,0,1] row_mask:0xf bank_mask:0xf")
for m in range(8):
    e(f"    v_mul_f32 v{SR+m}, s54, v{SR+m}")
    e(f"    v_add_u32 v18, {4*m}, v1")
    e(f"    v_cmp_gt_u32 vcc, s42, v18")
    e(f"    s_nop 1")
    e(f"    v_cndmask_b32 v{SR+m}, v17, v{SR+m}, vcc")
e(f"    v_max3_f32 v18, v{SR}, v{SR+1}, v{SR+2}")
e(f"    v_max3_f32 v18, v18, v{SR+3}, v{SR+4}")
e(f"    v_max3_f32 v18, v18, v{SR+5}, v{SR+6}")
e(f"    v_max_f32 v18, v18, v{SR+7}")
def xreduce(op, reg, tmp):
    e(f"    v_mov_b32 v{tmp}, v{reg}")
    e(f"    s_nop 1")
    e(f"    v_permlane16_swap_b32 v{reg}, v{tmp}")
    e(f"    v_{op}_f32 v{reg}, v{reg}, v{tmp}")
    e(f"    v_mov_b32 v{tmp}, v{reg}")
    e(f"    s_nop 1")
    e(f"    v_permlane32_swap_b32 v{reg}, v{tmp}")
    e(f"    v_{op}_f32 v{reg}, v{reg}, v{tmp}")
xreduce("max", 18, 17)
for i in range(8):
    e(f"    v_sub_f32 v{SR+i}, v{SR+i}, v18")
for i in range(8):
    e(f"    v_exp_f32 v{SR+i}, v{SR+i}")
e("    s_nop 0")
e(f"    v_add_f32 v19, v{SR}, v{SR+1}")
for i in range(2, 8):
    e(f"    v_add_f32 v19, v19, v{SR+i}")
xreduce("add", 19, 17)
for q in range(4):
    e(f"    v_cvt_pk_bf16_f32 v{20+q}, v{SR+2*q}, v{SR+1+2*q}")
e("    s_waitcnt vmcnt(0)")
for ee in range(8):
    c = ee >> 1
    sel = "s52" if (ee & 1) == 0 else "s53"
    for q in range(4):
        e(f"    v_perm_b32 v{KR+ee*4+q}, v{VR+4*(2*q+1)+c}, v{VR+4*(2*q)+c}, {sel}")
e("    s_nop 1")
for ee in range(8):
    e(f"    v_mfma_f32_16x16x32_bf16 v[{OR_+4*ee}:{OR_+3+4*ee}], v[20:23], v[{KR+4*ee}:{KR+3+4*ee}], 0")
e("    s_nop 7")
for ee in range(8):
    e(f"    v_mov_b32 v{SR+ee}, v{OR_+4*ee}")
e("    s_branch L1_join")
e("L1_empty:")
e("    v_mov_b32 v18, 0xf149f2ca")
e("    v_mov_b32 v19, 0")
for i in range(8):
    e(f"    v_mov_b32 v{SR+i}, 0")
e("L1_join:")
e(f"""
    s_lshl_b32 s55, s40, 11              ; w*2048
    v_and_b32 v1, 63, v0
    v_lshlrev_b32 v1, 5, v1
    v_add_u32 v1, s55, v1                ; w*2048 + lane*32
    s_lshl_b32 s55, s40, 5               ; w*32
    v_lshlrev_b32 v17, 1, v2             ; (n>>2)*8 for n%4==0 -> n*2
    v_add_u32 v17, s55, v17
    ds_write_b128 v1, v[{SR}:{SR+3}]
    ds_write_b128 v1, v[{SR+4}:{SR+7}] offset:16
    s_mov_b64 exec, 0x1111
    ds_write_b64 v17, v[18:19] offset:8192
    s_mov_b64 exec, -1
    s_waitcnt lgkmcnt(0)
    s_barrier
    v_lshlrev_b32 v1, 3, v0
    v_lshrrev_b32 v2, 6, v0
    v_lshlrev_b32 v2, 3, v2              ; head*8
""")
for w in range(4):
    e(f"    ds_read_b64 v[{16+2*w}:{17+2*w}], v1 offset:{w*2048}")
for w in range(4):
    e(f"    ds_read_b64 v[{24+2*w}:{25+2*w}], v2 offset:{8192+w*32}")
e("    s_waitcnt lgkmcnt(0)")
e("    v_max3_f32 v40, v24, v26, v28")
e("    v_max_f32 v40, v40, v30              ; M")
for w in range(4):
    e(f"    v_sub_f32 v{24+2*w}, v{24+2*w}, v40")
for w in range(4):
    e(f"    v_exp_f32 v{24+2*w}, v{24+2*w}")
e("    s_nop 0")
e("    v_mul_f32 v41, v24, v25")
e("    v_mul_f32 v44, v24, v16")
e("    v_mul_f32 v45, v24, v17")
for w in range(1, 4):
    e(f"    v_fmac_f32 v41, v{24+2*w}, v{25+2*w}")
    e(f"    v_fmac_f32 v44, v{24+2*w}, v{16+2*w}")
    e(f"    v_fmac_f32 v45, v{24+2*w}, v{17+2*w}")
e(f"""
    s_lshl_b32 s55, s39, 3
    s_add_u32 s55, s55, s36
    s_lshl_b32 s55, s55, 4
    s_add_u32 s55, s55, s38
    s_lshl_b32 s56, s55, 11
    s_lshl_b32 s57, s55, 5
    s_add_u32 s57, s57, {ML_OFF}
    buffer_store_dwordx2 v[44:45], v1, s[32:35], s56 offen
    s_mov_b64 exec, 1
    buffer_store_dwordx2 v[40:41], v2, s[32:35], s57 offen
L1_end:
    s_endpgm
""")
e(".globl %s_combine_kernel" % NAME)
e(".p2align 8")
e(".type %s_combine_kernel,@function" % NAME)
e("%s_combine_kernel:" % NAME)
e(f"""
    s_cmp_ge_u32 s2, 256
    s_cbranch_scc1 L2_end
    s_load_dwordx2 s[14:15], s[0:1], 40
    s_load_dwordx2 s[18:19], s[0:1], 56
    s_lshr_b32 s36, s2, 2
    s_and_b32 s37, s2, 3
    v_lshlrev_b32 v2, 3, v0              ; lane*8
    s_lshl_b32 s56, s36, 15              ; bh*16*2048
    s_lshl_b32 s40, s37, 9               ; head*512
    s_add_u32 s56, s56, s40
    s_lshl_b32 s57, s36, 9               ; bh*16*32
    s_lshl_b32 s40, s37, 3
    s_add_u32 s57, s57, s40
    s_add_u32 s57, s57, {ML_OFF}
    v_mov_b32 v3, 0
    s_waitcnt lgkmcnt(0)
    s_mov_b32 s32, s18
    s_and_b32 s33, s19, 0xffff
    s_mov_b32 s34, 0x800000
    s_mov_b32 s35, 0x00020000
    s_mov_b32 s28, s14
    s_and_b32 s29, s15, 0xffff
    s_mov_b32 s30, {QBYTES}
    s_mov_b32 s31, 0x00020000
""")
for c in range(16):
    e(f"    buffer_load_dwordx2 v[{48+2*c}:{49+2*c}], v3, s[32:35], s57 offen offset:{32*c}")
for c in range(16):
    e(f"    buffer_load_dwordx2 v[{16+2*c}:{17+2*c}], v2, s[32:35], s56 offen")
    if c<15: e(f"    s_add_u32 s56, s56, 2048")
e("    s_waitcnt vmcnt(16)")
e("    v_max_f32 v5, v48, v50")
for c in range(2, 16):
    e(f"    v_max_f32 v5, v5, v{48+2*c}")
for c in range(16):
    e(f"    v_sub_f32 v{48+2*c}, v{48+2*c}, v5")
for c in range(16):
    e(f"    v_exp_f32 v{48+2*c}, v{48+2*c}")
e("    s_nop 0")
e("    v_mul_f32 v7, v48, v49")
for c in range(1, 16):
    e(f"    v_fmac_f32 v7, v{48+2*c}, v{49+2*c}")
e("    v_rcp_f32 v7, v7")
e("    s_waitcnt vmcnt(0)")
e("    v_mul_f32 v9, v48, v16")
e("    v_mul_f32 v10, v48, v17")
for c in range(1, 16):
    e(f"    v_fmac_f32 v9, v{48+2*c}, v{16+2*c}")
    e(f"    v_fmac_f32 v10, v{48+2*c}, v{17+2*c}")
e(f"""
    v_mul_f32 v9, v9, v7
    v_mul_f32 v10, v10, v7
    v_cvt_pk_bf16_f32 v9, v9, v10
    v_lshlrev_b32 v11, 2, v0
    s_lshl_b32 s56, s2, 8                ; (bh*4+head)*256
    buffer_store_dword v9, v11, s[28:31], s56 offen
L2_end:
    s_endpgm
""")
e('.section .rodata,"a"')
for k, nv in ((NAME + "_kernel", 128), (NAME + "_combine_kernel", 80)):
    e(".p2align 6")
    e(f".amdhsa_kernel {k}")
    e(f"  .amdhsa_next_free_vgpr {nv}")
    e("  .amdhsa_next_free_sgpr 72")
    e(f"  .amdhsa_accum_offset {nv}")
    e("  .amdhsa_group_segment_fixed_size 0")
    e("  .amdhsa_kernarg_size 64")
    e("  .amdhsa_user_sgpr_count 2")
    e("  .amdhsa_user_sgpr_kernarg_segment_ptr 1")
    e("  .amdhsa_system_sgpr_workgroup_id_x 1")
    e(".end_amdhsa_kernel")
open(OUT or ("cdna_kernels/%s.s" % NAME), "w").write("\n".join(o) + "\n")
```

```python
import os
STAGE=int(os.environ.get("STAGE","9"))
OUT=os.environ.get("OUT")
NT=os.environ.get("NT","")
COH=os.environ.get("COH","")
SC=os.environ.get("SC","sc0 sc1")
NAME = "standalone__paged_block_table_kv_radixattention__sampling"
hdr = open("cdna_kernels/%s.s.ref" % NAME).read().split("; Override launch")[0]
o = []
def e(s=""): o.append(s)
e(hdr.rstrip())
e("; @launch grid=(1024,1,1) block=(256,1,1) lds=8320")
e('.amdgcn_target "amdgcn-amd-amdhsa--gfx950"')
e(".text")
e(".globl %s_kernel" % NAME)
e(".p2align 8")
e(".type %s_kernel,@function" % NAME)
e("%s_kernel:" % NAME)
KBYTES = 576*16*8*128*2
QBYTES = 8*32*128*2
ML_OFF = 4*1024*1024
e(f"""
    s_cmp_ge_u32 s2, 1024
    s_cbranch_scc1 L1_end
    s_load_dwordx16 s[4:19], s[0:1], 0
    s_and_b32 s60, s2, 7
    s_lshr_b32 s37, s2, 3
    s_and_b32 s61, s37, 1                ; c'
    s_bfe_u32 s36, s37, 0x30001          ; hkv
    s_lshr_b32 s39, s37, 4               ; b
    s_lshl_b32 s38, s61, 3
    s_add_u32 s38, s38, s60
    v_lshrrev_b32 v1, 6, v0
    v_and_b32 v2, 15, v0                 ; n
    v_readfirstlane_b32 s40, v1
    v_bfe_u32 v3, v0, 4, 2               ; g
    s_lshl_b32 s41, s39, 2               ; b*4
    s_lshl_b32 s62, s61, 2
    s_add_u32 s62, s62, s40              ; 4c'+w
    s_lshl_b32 s62, s62, 3
    s_add_u32 s62, s62, s60
    s_lshl_b32 s43, s39, 9               ; b*512
    s_lshl_b32 s46, s62, 3
    s_add_u32 s43, s43, s46
    s_waitcnt lgkmcnt(0)
    {"s_branch L1_end" if STAGE==0 else ""}
    s_load_dword s42, s[12:13], s41      ; ctx
    s_load_dwordx2 s[44:45], s[10:11], s43
    s_mov_b32 s20, s6
    s_and_b32 s21, s7, 0xffff
    s_mov_b32 s22, {KBYTES}
    s_mov_b32 s23, 0x00020000
    s_mov_b32 s24, s8
    s_and_b32 s25, s9, 0xffff
    s_mov_b32 s26, {KBYTES}
    s_mov_b32 s27, 0x00020000
    s_mov_b32 s28, s4
    s_and_b32 s29, s5, 0xffff
    s_mov_b32 s30, {QBYTES}
    s_mov_b32 s31, 0x00020000
    s_mov_b32 s32, s18
    s_and_b32 s33, s19, 0xffff
    s_mov_b32 s34, 0x800000
    s_mov_b32 s35, 0x00020000
    v_lshrrev_b32 v8, 2, v2
    v_and_b32 v9, 3, v2                  ; c
    v_lshl_add_u32 v10, v3, 2, v9        ; 4g + c
    v_lshlrev_b32 v10, 4, v10            ; (4g+c)*16
    v_lshl_add_u32 v4, v8, 11, v10       ; voffK = a*2048 + (4g+c)*16
    v_add_u32 v11, 0x2000, v4            ; +4 tokens*2048
    v_add_u32 v12, 0x4000, v4
    v_add_u32 v13, 0x6000, v4
    v_lshl_add_u32 v7, v8, 8, v10        ; voffQ = h*256 + (4g+c)*16
    v_lshlrev_b32 v5, 11, v3
    v_lshl_add_u32 v5, v2, 4, v5         ; voffV = g*2048 + n*16
    v_add_u32 v14, 0x2000, v5
    v_add_u32 v15, 0x4000, v5
    v_add_u32 v16, 0x6000, v5
    s_lshl_b32 s48, s62, 5
    s_lshl_b32 s49, s36, 8               ; hkv*256
    s_lshl_b32 s50, s39, 13              ; b*32*256
    s_lshl_b32 s51, s36, 10              ; hkv*4*256
    s_add_u32 s50, s50, s51              ; q soffset
    s_mov_b32 s52, 0x05040100
    s_mov_b32 s53, 0x07060302
    s_mov_b32 s54, 0x3e0293ee
    buffer_load_dwordx4 v[20:23], v7, s[28:31], s50 offen {NT}
    s_waitcnt lgkmcnt(0)
    {"s_branch L1_end" if STAGE==1 else ""}
    s_cmp_ge_u32 s48, s42
    s_cbranch_scc1 L1_empty
    s_lshl_b32 s44, s44, 15
    s_lshl_b32 s45, s45, 15
    s_add_u32 s44, s44, s49
    s_add_u32 s45, s45, s49
""")
KR=24; VR=56; SR=88; OR_=96
kv=[4,11,12,13]; vv=[5,14,15,16]
for m in range(8):
    e(f"    buffer_load_dwordx4 v[{KR+4*m}:{KR+3+4*m}], v{kv[m&3]}, s[20:23], s{44+(m>>2)} offen {NT}")
for i in range(8):
    e(f"    buffer_load_dwordx4 v[{VR+4*i}:{VR+3+4*i}], v{vv[i&3]}, s[24:27], s{44+(i>>2)} offen {NT}")
if STAGE==2:
    e("    s_waitcnt vmcnt(0)")
    e("    s_branch L1_end")
e("    v_cmp_eq_u32 s[64:65], 0, v9")
e("    v_cmp_eq_u32 s[66:67], 1, v9")
e("    v_cmp_eq_u32 s[68:69], 2, v9")
e("    v_add_u32 v1, s48, v3")
e("    v_mov_b32 v17, 0xf149f2ca            ; -1e30")
e("    s_waitcnt vmcnt(0)")
for m in range(8):
    e(f"    v_mfma_f32_16x16x32_bf16 v[{OR_+4*m}:{OR_+3+4*m}], v[{KR+4*m}:{KR+3+4*m}], v[20:23], 0")
e("    s_nop 7")
for m in range(8):
    d=OR_+4*m
    e(f"    v_cndmask_b32 v{SR+m}, v{d+3}, v{d+2}, s[68:69]")
    e(f"    v_cndmask_b32 v{SR+m}, v{SR+m}, v{d+1}, s[66:67]")
    e(f"    v_cndmask_b32 v{SR+m}, v{SR+m}, v{d}, s[64:65]")
e("    s_nop 1")
for m in range(8):
    e(f"    v_add_f32_dpp v{SR+m}, v{SR+m}, v{SR+m} quad_perm:[1,0,3,2] row_mask:0xf bank_mask:0xf")
e("    s_nop 1")
for m in range(8):
    e(f"    v_add_f32_dpp v{SR+m}, v{SR+m}, v{SR+m} quad_perm:[2,3,0,1] row_mask:0xf bank_mask:0xf")
for m in range(8):
    e(f"    v_mul_f32 v{SR+m}, s54, v{SR+m}")
    e(f"    v_add_u32 v18, {4*m}, v1")
    e(f"    v_cmp_gt_u32 vcc, s42, v18")
    e(f"    s_nop 1")
    e(f"    v_cndmask_b32 v{SR+m}, v17, v{SR+m}, vcc")
e(f"    v_max3_f32 v18, v{SR}, v{SR+1}, v{SR+2}")
e(f"    v_max3_f32 v18, v18, v{SR+3}, v{SR+4}")
e(f"    v_max3_f32 v18, v18, v{SR+5}, v{SR+6}")
e(f"    v_max_f32 v18, v18, v{SR+7}")
def xreduce(op, reg, tmp):
    e(f"    v_mov_b32 v{tmp}, v{reg}")
    e(f"    s_nop 1")
    e(f"    v_permlane16_swap_b32 v{reg}, v{tmp}")
    e(f"    v_{op}_f32 v{reg}, v{reg}, v{tmp}")
    e(f"    v_mov_b32 v{tmp}, v{reg}")
    e(f"    s_nop 1")
    e(f"    v_permlane32_swap_b32 v{reg}, v{tmp}")
    e(f"    v_{op}_f32 v{reg}, v{reg}, v{tmp}")
xreduce("max", 18, 17)
for i in range(8):
    e(f"    v_sub_f32 v{SR+i}, v{SR+i}, v18")
for i in range(8):
    e(f"    v_exp_f32 v{SR+i}, v{SR+i}")
e("    s_nop 0")
e(f"    v_add_f32 v19, v{SR}, v{SR+1}")
for i in range(2, 8):
    e(f"    v_add_f32 v19, v19, v{SR+i}")
xreduce("add", 19, 17)
for q in range(4):
    e(f"    v_cvt_pk_bf16_f32 v{20+q}, v{SR+2*q}, v{SR+1+2*q}")
e("    s_waitcnt vmcnt(0)")
for ee in range(8):
    c = ee >> 1
    sel = "s52" if (ee & 1) == 0 else "s53"
    for q in range(4):
        e(f"    v_perm_b32 v{KR+ee*4+q}, v{VR+4*(2*q+1)+c}, v{VR+4*(2*q)+c}, {sel}")
e("    s_nop 1")
for ee in range(8):
    e(f"    v_mfma_f32_16x16x32_bf16 v[{OR_+4*ee}:{OR_+3+4*ee}], v[20:23], v[{KR+4*ee}:{KR+3+4*ee}], 0")
e("    s_nop 7")
for ee in range(8):
    e(f"    v_mov_b32 v{SR+ee}, v{OR_+4*ee}")
e("    s_branch L1_join")
e("L1_empty:")
e("    s_waitcnt vmcnt(0)")
e("    v_mov_b32 v18, 0xf149f2ca")
e("    v_mov_b32 v19, 0")
for i in range(8):
    e(f"    v_mov_b32 v{SR+i}, 0")
e("L1_join:")
e(f"""
    s_lshl_b32 s55, s40, 11              ; w*2048
    v_and_b32 v1, 63, v0
    v_lshlrev_b32 v1, 5, v1
    v_add_u32 v1, s55, v1                ; w*2048 + lane*32
    s_lshl_b32 s55, s40, 5               ; w*32
    v_lshlrev_b32 v17, 1, v2             ; (n>>2)*8 for n%4==0 -> n*2
    v_add_u32 v17, s55, v17
    ds_write_b128 v1, v[{SR}:{SR+3}]
    ds_write_b128 v1, v[{SR+4}:{SR+7}] offset:16
    s_mov_b64 exec, 0x1111
    ds_write_b64 v17, v[18:19] offset:8192
    s_mov_b64 exec, -1
    s_waitcnt lgkmcnt(0)
    s_barrier
    v_lshlrev_b32 v1, 3, v0
    v_lshrrev_b32 v2, 6, v0
    v_lshlrev_b32 v2, 3, v2              ; head*8
""")
for w in range(4):
    e(f"    ds_read_b64 v[{16+2*w}:{17+2*w}], v1 offset:{w*2048}")
for w in range(4):
    e(f"    ds_read_b64 v[{24+2*w}:{25+2*w}], v2 offset:{8192+w*32}")
e("    s_waitcnt lgkmcnt(0)")
e("    v_max3_f32 v40, v24, v26, v28")
e("    v_max_f32 v40, v40, v30              ; M")
for w in range(4):
    e(f"    v_sub_f32 v{24+2*w}, v{24+2*w}, v40")
for w in range(4):
    e(f"    v_exp_f32 v{24+2*w}, v{24+2*w}")
e("    s_nop 0")
e("    v_mul_f32 v41, v24, v25")
e("    v_mul_f32 v44, v24, v16")
e("    v_mul_f32 v45, v24, v17")
for w in range(1, 4):
    e(f"    v_fmac_f32 v41, v{24+2*w}, v{25+2*w}")
    e(f"    v_fmac_f32 v44, v{24+2*w}, v{16+2*w}")
    e(f"    v_fmac_f32 v45, v{24+2*w}, v{17+2*w}")
e(f"""
    s_lshl_b32 s55, s39, 3
    s_add_u32 s55, s55, s36
    s_lshl_b32 s55, s55, 4
    s_add_u32 s55, s55, s38
    s_lshl_b32 s56, s55, 11
    s_lshl_b32 s57, s55, 5
    s_add_u32 s57, s57, {ML_OFF}
    buffer_store_dwordx2 v[44:45], v1, s[32:35], s56 offen {SC}
    s_mov_b64 exec, 1
    buffer_store_dwordx2 v[40:41], v2, s[32:35], s57 offen {SC}
    s_mov_b64 exec, -1
    {("s_waitcnt vmcnt(0)" + chr(10) + "    buffer_wbl2 " + SC) if "w" in COH else ""}
    s_waitcnt vmcnt(0)
    s_barrier
    s_lshr_b32 s58, s55, 4               ; bh
    s_cmp_lg_u32 s40, 0
    s_cbranch_scc1 L1_wait_ticket
    s_lshl_b32 s59, s58, 2
    v_mov_b32 v3, s59
    v_mov_b32 v4, 1
    s_mov_b64 exec, 1
    global_atomic_add v5, v3, v4, s[16:17] sc0 sc1
    s_waitcnt vmcnt(0)
    v_mov_b32 v6, 0
    ds_write_b32 v6, v5
    s_mov_b64 exec, -1
    s_waitcnt lgkmcnt(0)
L1_wait_ticket:
    s_barrier
    v_mov_b32 v6, 0
    ds_read_b32 v5, v6
    s_waitcnt lgkmcnt(0)
    v_readfirstlane_b32 s59, v5
    s_cmp_lg_u32 s59, 15
    s_cbranch_scc1 L1_end
    {("buffer_inv " + SC) if "i" in COH else ""}
    s_mov_b32 s28, s14
    s_and_b32 s29, s15, 0xffff
    s_mov_b32 s30, {QBYTES}
    s_mov_b32 s31, 0x00020000
    v_and_b32 v2, 63, v0
    v_lshlrev_b32 v11, 2, v2
    v_lshlrev_b32 v2, 3, v2              ; lane*8
    s_lshl_b32 s56, s58, 15              ; bh*16*2048
    s_lshl_b32 s41, s40, 9               ; head*512
    s_add_u32 s56, s56, s41
    s_lshl_b32 s57, s58, 9               ; bh*16*32
    s_lshl_b32 s41, s40, 3
    s_add_u32 s57, s57, s41
    s_add_u32 s57, s57, {ML_OFF}
    v_mov_b32 v3, 0
""")
for c in range(16):
    e(f"    buffer_load_dwordx2 v[{48+2*c}:{49+2*c}], v3, s[32:35], s57 offen offset:{32*c} {SC}")
for c in range(16):
    e(f"    buffer_load_dwordx2 v[{16+2*c}:{17+2*c}], v2, s[32:35], s56 offen {SC}")
    if c<15: e(f"    s_add_u32 s56, s56, 2048")
e("    s_waitcnt vmcnt(0)")
e("    v_max_f32 v5, v48, v50")
for c in range(2, 16):
    e(f"    v_max_f32 v5, v5, v{48+2*c}")
for c in range(16):
    e(f"    v_sub_f32 v{48+2*c}, v{48+2*c}, v5")
for c in range(16):
    e(f"    v_exp_f32 v{48+2*c}, v{48+2*c}")
e("    s_nop 0")
e("    v_mul_f32 v7, v48, v49")
for c in range(1, 16):
    e(f"    v_fmac_f32 v7, v{48+2*c}, v{49+2*c}")
e("    v_rcp_f32 v7, v7")
e("    v_mul_f32 v9, v48, v16")
e("    v_mul_f32 v10, v48, v17")
for c in range(1, 16):
    e(f"    v_fmac_f32 v9, v{48+2*c}, v{16+2*c}")
    e(f"    v_fmac_f32 v10, v{48+2*c}, v{17+2*c}")
e(f"""
    v_mul_f32 v9, v9, v7
    v_mul_f32 v10, v10, v7
    v_cvt_pk_bf16_f32 v9, v9, v10
    s_lshl_b32 s56, s58, 2
    s_add_u32 s56, s56, s40
    s_lshl_b32 s56, s56, 8               ; (bh*4+head)*256
    buffer_store_dword v9, v11, s[28:31], s56 offen
L1_end:
    s_endpgm
""")
e('.section .rodata,"a"')
for k, nv in ((NAME + "_kernel", 128),):
    e(".p2align 6")
    e(f".amdhsa_kernel {k}")
    e(f"  .amdhsa_next_free_vgpr {nv}")
    e("  .amdhsa_next_free_sgpr 72")
    e(f"  .amdhsa_accum_offset {nv}")
    e("  .amdhsa_group_segment_fixed_size 0")
    e("  .amdhsa_kernarg_size 64")
    e("  .amdhsa_user_sgpr_count 2")
    e("  .amdhsa_user_sgpr_kernarg_segment_ptr 1")
    e("  .amdhsa_system_sgpr_workgroup_id_x 1")
    e(".end_amdhsa_kernel")
open(OUT or ("cdna_kernels/%s.s" % NAME), "w").write("\n".join(o) + "\n")
```
